```python
import torch

def _softmax(x, axis=-1):
    return torch.softmax(x, dim=axis)
def _gelu(x):
    return torch.nn.functional.gelu(x, approximate="tanh")
def _silu(x):
    return torch.nn.functional.silu(x)
def _sigmoid(x):
    return torch.sigmoid(x)
def _layernorm(x, axis=-1, eps=1e-5):
    m = x.mean(dim=axis, keepdim=True)
    v = x.var(dim=axis, keepdim=True, unbiased=False)
    return (x - m) / torch.sqrt(v + eps)
def _scatter_add(tgt, idx, src, axis=0):
    return tgt.clone().index_add_(axis, idx, src)
def _segment_sum(src, seg, n):
    out = torch.zeros((n,) + src.shape[1:], dtype=src.dtype)
    return out.index_add_(0, seg, src)
def _pad(x, pw):
    flat = tuple(v for pair in reversed(pw) for v in pair)
    return torch.nn.functional.pad(x, flat)

kernel_name = 'gated_mix__softmax_full_mha__ssm_conv_h3__prompt'

def setup_inputs():

    _w = (lambda a: (lambda t: t.to(torch.bfloat16) if t.is_floating_point() else t)(torch.as_tensor(a)))
    def _A_setup():
        B, S, D = 1, 2048, 640
        return {
            "x": _w((lambda *s: torch.randn(*s, dtype=torch.bfloat16) * 0.05)(B, S, D)),
            "wqkv": _w((lambda *s: torch.randn(*s, dtype=torch.bfloat16) * 0.8)(D, 3 * D)),
            "wo": _w((lambda *s: torch.randn(*s, dtype=torch.bfloat16) * 0.05)(D, D)),
        }
    _A_in = _A_setup()

    def _B_setup():
        B, S, D = 1, 2048, 640
        ks = 4
        return {
            "q": _w((lambda *s: torch.randn(*s, dtype=torch.bfloat16) * 0.05)(B, S, D)),
            "k": _w((lambda *s: torch.randn(*s, dtype=torch.bfloat16) * 0.8)(B, S, D)),
            "v": _w((lambda *s: torch.randn(*s, dtype=torch.bfloat16) * 0.4)(B, S, D)),
            "shift_k": _w((lambda *s: torch.randn(*s, dtype=torch.bfloat16) * 0.8)(D, ks) * 0.5),
            "ssm_k": _w((lambda *s: torch.randn(*s, dtype=torch.bfloat16) * 0.8)(D, S) * (1.0 / S ** 0.5)),
            "ssm_D": _w((lambda *s: torch.randn(*s, dtype=torch.bfloat16) * 0.4)(D)),
        }
    _B_in = _B_setup()

    return {
        "A_x": _A_in["x"],
        "A_wqkv": _A_in["wqkv"],
        "A_wo": _A_in["wo"],
        "B_q": _B_in["q"],
        "B_k": _B_in["k"],
        "B_v": _B_in["v"],
        "B_shift_k": _B_in["shift_k"],
        "B_ssm_k": _B_in["ssm_k"],
        "B_ssm_D": _B_in["ssm_D"],
        "gate_w": _w((lambda *s: torch.randn(*s, dtype=torch.bfloat16) * 0.05)(640) * 16.0),
    }

def reference(A_x, A_wqkv, A_wo, B_q, B_k, B_v, B_shift_k, B_ssm_k, B_ssm_D, gate_w):
    def _A_ref(x, wqkv, wo):
        B, S, D = x.shape
        H = 32; Dh = D // H
        qkv = (lambda x, *d: x.permute(*d))((x @ wqkv).reshape(B, S, 3, H, Dh), 2, 0, 3, 1, 4)
        q, k, v = qkv[0], qkv[1], qkv[2]
        scale = Dh ** -0.5
        scores = torch.einsum("bhqd,bhkd->bhqk", q, k) * scale
        p = _softmax(scores, axis=-1)
        o = torch.einsum("bhqk,bhkd->bhqd", p, v)
        return (lambda x, *d: x.permute(*d))(o, 0, 2, 1, 3).reshape(B, S, D) @ wo

    def _B_ref(q, k, v, shift_k, ssm_k, ssm_D):
        B, S, D = q.shape
        ks = shift_k.shape[-1]
        k_pad = _pad(k, ((0, 0), (ks - 1, 0), (0, 0)))
        k_shift = torch.zeros_like(k)
        for t in range(ks):
            k_shift = k_shift + k_pad[:, t:t + S, :] * shift_k[:, ks - 1 - t][None, None, :]
        kv = k_shift * v
        L = 2 * S
        kv_pad = _pad(kv, ((0, 0), (0, S), (0, 0)))
        kf_pad = _pad(ssm_k, ((0, 0), (0, S)))
        kv_f = (lambda x, axes=(-2,-1): torch.fft.rfft2(x.float(), dim=axes))(kv_pad[:, None, :, :], axes=(1, 2))
        kf_f = (lambda x, axes=(-2,-1): torch.fft.rfft2(x.float(), dim=axes))(kf_pad[:, None, :], axes=(1, 2))
        kf_f = (lambda x, *d: x.permute(*d))(kf_f, 1, 2, 0)
        y_f = kv_f * kf_f[None, :, :, :]
        y = (lambda x, s, axes=(-2,-1): torch.fft.irfft2(x, s=s, dim=axes).to(torch.bfloat16))(y_f, (1, L), axes=(1, 2))[:, 0, :S, :]
        y = y + kv * ssm_D[None, None, :]
        return q * y

    x = A_x
    g = _sigmoid((x * gate_w).sum(-1, keepdims=True))
    a = _A_ref(x, A_wqkv, A_wo)
    b = _B_ref(x, B_k, B_v, B_shift_k, B_ssm_k, B_ssm_D)
    return g * a + (1 - g) * b
```

```python
import re

TRANS = ("v_exp_f32", "v_log_f32", "v_rcp_f32", "v_rsq_f32", "v_sqrt_f32", "v_sin_f32", "v_cos_f32", "v_exp_f16", "v_rcp_iflag_f32")

def _regs(tok):
    tok = tok.strip()
    neg = tok.startswith('-')
    if neg: tok = tok[1:]
    m = re.fullmatch(r'abs\((.*)\)', tok)
    if m: tok = m.group(1)
    m = re.fullmatch(r'\|(.*)\|', tok)
    if m: tok = m.group(1)
    m = re.fullmatch(r'([vsa])(\d+)', tok)
    if m: return [(m.group(1), int(m.group(2)))]
    m = re.fullmatch(r'([vsa])\[(\d+):(\d+)\]', tok)
    if m: return [(m.group(1), i) for i in range(int(m.group(2)), int(m.group(3)) + 1)]
    if tok in ('vcc',): return [('x', 'vcc')]
    if tok in ('vcc_lo', 'vcc_hi'): return [('x', 'vcc')]
    if tok in ('exec', 'exec_lo', 'exec_hi'): return [('x', 'exec')]
    if tok == 'm0': return [('x', 'm0')]
    if tok == 'scc': return [('x', 'scc')]
    return []

class Ins:
    def __init__(self, text):
        self.text = text.strip()
        t = self.text.split(';')[0].strip()
        self.is_label = t.endswith(':')
        self.defs = set(); self.uses = set()
        self.op = ''
        self.kind = 'other'
        self.srcc = set(); self.srcab = set()
        self.passes = 0
        self.ws = 1
        self.target = None
        if self.is_label or not t or t.startswith('.'):
            self.kind = 'label' if self.is_label else 'dir'
            self.ws = 0
            if self.is_label: self.name = t[:-1]
            return
        parts = t.split(None, 1)
        op = parts[0]; self.op = op
        rest = parts[1] if len(parts) > 1 else ''
        ops = [o.strip() for o in re.split(r',(?![^\[]*\])', rest)] if rest else []
        mods = []
        if ops:
            lp = ops[-1].split()
            ops[-1] = lp[0] if lp else ''
            mods = lp[1:]
        self.mods = mods
        self.ops = ops
        R = [_regs(o) for o in ops]
        def D(i):
            for r in R[i]: self.defs.add(r)
        def U(i):
            for r in R[i]: self.uses.add(r)
        n = len(ops)
        if op == 's_nop':
            self.kind = 'nop'; self.ws = int(ops[0], 0) + 1; return
        if op in ('s_waitcnt', 's_barrier', 's_endpgm', 's_setprio', 's_sleep', 's_sendmsg'):
            self.kind = 'misc'; return
        if op.startswith('s_cbranch') or op == 's_branch':
            self.kind = 'branch'; self.target = ops[0]
            return
        if op.startswith('v_mfma'):
            self.kind = 'mfma'
            D(0); U(1); U(2); U(3)
            self.srcab = set(R[1]) | set(R[2]); self.srcc = set(R[3]); self.dlist = R[0]; self.clist = R[3]
            self.passes = 8 if '32x32' in op else 4
            if '4x4x4' in op: self.passes = 2
            return
        if op.startswith('buffer_') or op.startswith('global_') or op.startswith('ds_') or op.startswith('flat_'):
            self.kind = 'ds' if op.startswith('ds_') else 'vmem'
            is_lds = 'lds' in mods
            st = ('store' in op) or op.startswith('ds_write') or (op.startswith('ds_add') and 'rtn' not in op) or ('atomic' in op and 'sc0' not in mods)
            if op in ('buffer_inv', 'buffer_wbl2'): return
            if is_lds:
                for i in range(n): U(i)
                self.uses.add(('x', 'm0')); self.lds_dma = True
            elif st:
                for i in range(n): U(i)
                self.store = True
                if op.startswith('ds_'):
                    self.data = set()
                elif op.startswith('buffer_'):
                    self.data = set(R[0])
                else:
                    self.data = set(R[1])
                self.wide = ('x4' in op or 'x3' in op)
            else:
                D(0)
                for i in range(1, n): U(i)
                if 'atomic' in op: U(0)
            return
        if op.startswith('s_'):
            self.kind = 'salu'
            if op.startswith('s_load') or op.startswith('s_buffer_load') or op.startswith('s_memtime') or op.startswith('s_memrealtime') or op.startswith('s_atomic'):
                self.kind = 'smem'
                D(0)
                for i in range(1, n): U(i)
                return
            if op.startswith('s_cmp') or op.startswith('s_bitcmp'):
                for i in range(n): U(i)
                self.defs.add(('x', 'scc')); return
            D(0)
            for i in range(1, n): U(i)
            if 'saveexec' in op: self.defs.add(('x', 'exec'))
            return
        if op.startswith('v_'):
            self.kind = 'valu'
            self.trans = op.replace('_e32', '').replace('_e64', '') in TRANS
            self.dpp = any(m.startswith(('quad_perm', 'row_', 'wave_')) for m in mods) or op.endswith('_dpp')
            self.sdwa = op.endswith('_sdwa')
            if op.startswith('v_cmp'):
                D(0)
                for i in range(1, n): U(i)
                if op.startswith('v_cmpx'): self.defs.add(('x', 'exec'))
                return
            if op.startswith('v_permlane') and 'swap' in op:
                D(0); D(1); U(0); U(1); self.permlane = True; return
            if op.startswith(('v_readfirstlane', 'v_readlane')):
                D(0)
                for i in range(1, n): U(i)
                self.readlane = True; return
            if re.match(r'v_(add|sub|subrev|addc|subb)_co', op):
                D(0); D(1)
                for i in range(2, n): U(i)
                return
            D(0)
            for i in range(1, n): U(i)
            if op.startswith(('v_fmac', 'v_pk_fmac', 'v_mac', 'v_dot2c')) or self.dpp or self.sdwa or op.startswith('v_writelane'):
                U(0)
            return
        raise ValueError("unknown instruction: " + text)

def vg(s):
    return {r for r in s if r[0] in ('v', 'a')}
def sg(s):
    return {r for r in s if r[0] == 's' or r == ('x', 'vcc')}

def need(p, c):
    w = 0
    k = p.kind
    if k == 'valu':
        pd = vg(p.defs)
        if c.kind == 'mfma' and pd & vg(c.uses): w = max(w, 2)
        if c.kind == 'valu':
            if getattr(c, 'dpp', False) and pd & vg(c.uses): w = max(w, 2)
            if getattr(c, 'permlane', False) and pd & vg(c.uses): w = max(w, 2)
            if getattr(c, 'readlane', False) and pd & vg(c.uses): w = max(w, 1)
            if getattr(p, 'trans', False) and pd & (vg(c.uses)) and not getattr(c, 'trans', False): w = max(w, 1)
            if getattr(p, 'sdwa', False) and pd & (vg(c.uses) | vg(c.defs)): w = max(w, 1)
            ps = sg(p.defs)
            if ps & sg(c.uses):
                w = max(w, 4 if getattr(c, 'readlane', False) or c.op.startswith('v_writelane') else 2)
                if c.op.startswith('v_div_fmas'): w = max(w, 4)
            if ('x', 'exec') in p.defs:
                w = max(w, 5 if getattr(c, 'dpp', False) else 4 if getattr(c, 'readlane', False) or getattr(c, 'permlane', False) else 0)
        if getattr(p, 'trans', False) and c.kind in ('vmem', 'ds') and pd & vg(c.uses): w = max(w, 1)
        if c.kind in ('vmem',) and sg(p.defs) & sg(c.uses): w = max(w, 5)
        if c.kind == 'mfma' and ('x', 'exec') in p.defs: w = max(w, 4)
        if c.kind in ('salu', 'smem') and sg(p.defs) & sg(c.uses): w = max(w, 1)
    if k == 'mfma':
        pd = vg(p.defs)
        P = p.passes
        raw = {2: 5, 4: 8, 8: 12, 16: 20}[P]
        ovl = {2: 4, 4: 6, 8: 10, 16: 18}[P]
        if c.kind == 'mfma':
            if pd & c.srcab: w = max(w, raw)
            if pd & vg(c.srcc):
                if c.clist == p.dlist and c.passes == P:
                    w = max(w, 2 if P == 2 else 0)
                else:
                    w = max(w, ovl)
            elif pd & vg(c.defs):
                w = max(w, ovl)
        elif c.kind in ('valu',):
            if pd & (vg(c.uses) | vg(c.defs)): w = max(w, raw)
            if vg(p.srcc) & vg(c.defs): w = max(w, {2: 1, 4: 3, 8: 7, 16: 15}[P])
        elif c.kind in ('vmem', 'ds'):
            if pd & (vg(c.uses) | vg(c.defs)): w = max(w, raw)
            if vg(p.srcc) & vg(c.defs): w = max(w, {2: 1, 4: 3, 8: 7, 16: 15}[P])
    if k == 'salu':
        if ('x', 'm0') in p.defs and getattr(c, 'lds_dma', False): w = max(w, 1)
    if k == 'vmem' and getattr(p, 'store', False) and getattr(p, 'wide', False):
        if p.data & vg(c.defs): w = max(w, 2 if c.kind == 'valu' else 1)
    return w

class Asm:
    def __init__(self):
        self.items = []
        self._lab = 0
    def __call__(self, text):
        for line in text.strip('\n').split('\n'):
            s = line.strip()
            if not s: continue
            if s.startswith(';'):
                self.items.append(Ins('.; ' + s)); self.items[-1].text = s; continue
            self.items.append(Ins(s))
    def label(self, name):
        self.items.append(Ins(name + ':'))
    def newlabel(self, base='L'):
        self._lab += 1
        return f"{base}_{self._lab}"
    def fix_hazards(self, window=24):
        changed = True
        total = 0
        while changed:
            changed = False
            items = self.items
            labels = {it.name: i for i, it in enumerate(items) if it.kind == 'label'}
            def scan_back(idx, c, dist, depth, seen):
                worst = 0
                i = idx - 1
                while i >= 0 and dist < window:
                    it = items[i]
                    if it.kind == 'label':
                        for j, b in enumerate(items):
                            if b.kind == 'branch' and b.target == it.name and (j, dist) not in seen and depth < 3:
                                seen.add((j, dist))
                                worst = max(worst, scan_back(j + 1, c, dist, depth + 1, seen))
                        i -= 1; continue
                    if it.kind == 'dir':
                        i -= 1; continue
                    if it.op == 's_branch' and i != idx - 1:
                        break
                    if it.op == 's_endpgm':
                        break
                    w = need(it, c)
                    if w > dist: worst = max(worst, w - dist)
                    dist += it.ws
                    i -= 1
                return worst
            for idx, c in enumerate(items):
                if c.kind in ('label', 'dir', 'nop', 'misc', 'branch'): continue
                d = scan_back(idx, c, 0, 0, set())
                if d > 0:
                    ins = []
                    while d > 0:
                        n = min(d, 16)
                        ins.append(Ins(f"s_nop {n-1}"))
                        d -= n
                    self.items[idx:idx] = ins
                    total += len(ins)
                    changed = True
                    break
        return total
    def text(self):
        out = []
        for it in self.items:
            if it.kind == 'label': out.append(it.text)
            else: out.append('  ' + it.text)
        return '\n'.join(out)
    def maxreg(self):
        mv = -1; ms = -1
        for it in self.items:
            for r in it.defs | it.uses:
                if r[0] == 'v': mv = max(mv, r[1])
                if r[0] == 's': ms = max(ms, r[1])
        return mv, ms

def vr(b, n=1):
    return f"v{b}" if n == 1 else f"v[{b}:{b+n-1}]"
def sr(b, n=1):
    return f"s{b}" if n == 1 else f"s[{b}:{b+n-1}]"

G128 = [list(range(0,4))+list(range(12,16))+list(range(20,28)),
        list(range(4,12))+list(range(16,20))+list(range(28,32)),
        list(range(32,36))+list(range(44,48))+list(range(52,60)),
        list(range(36,44))+list(range(48,52))+list(range(60,64))]
def lds_cycles(kind, addrs, active=None):
    if active is None: active = [True]*64
    if kind == 'b128': groups, nd, nb = G128, 4, 64
    elif kind in ('b64', 'tr'): groups, nd, nb = [list(range(32)), list(range(32, 64))], 2, 64
    elif kind == 'b32': groups, nd, nb = [list(range(32)), list(range(32, 64))], 1, 32
    elif kind == 'w64': groups, nd, nb = [list(range(16*i, 16*i+16)) for i in range(4)], 2, 32
    elif kind == 'w128': groups, nd, nb = [list(range(8*i, 8*i+8)) for i in range(8)], 4, 32
    elif kind == 'w32': groups, nd, nb = [list(range(32)), list(range(32, 64))], 1, 32
    tot = 0
    for g in groups:
        banks = {}
        for l in g:
            if not active[l]: continue
            for d in range(nd):
                dw = addrs[l] // 4 + d
                banks.setdefault(dw % nb, set()).add(dw)
        tot += max([len(s) for s in banks.values()] + [1])
    return tot
```

```python
from asmlib import *
S = 2048; D = 640; H = 32; DH = 20
WS_KV = 0
KVT = 2560
WS_Q = WS_KV + 32*64*KVT
QT = 1280
WS_UR = WS_Q + 32*64*QT
URP = 4352
WS_G = WS_UR + 640*URP
WS_O = WS_G + 8192
WS_Y = WS_O + S*D*2
WS_END = WS_Y + S*D*2
assert WS_Q % 128 == 0 and WS_UR % 128 == 0 and WS_G % 128 == 0 and WS_O % 128 == 0 and WS_Y % 128 == 0
import math
QSCALE = (DH ** -0.5) * math.log2(math.e)
import struct
def f32bits(x): return struct.unpack('<I', struct.pack('<f', x))[0]
KA = dict(x=0, wqkv=8, wo=16, bq=24, bk=32, bv=40, sk=48, ssmk=56, ssmd=64, gw=72, out=80, dbg=88, ws=96)

def srd(a, sbase, sptr, size):
    a(f"s_mov_b32 s{sbase}, s{sptr}")
    a(f"s_and_b32 s{sbase+1}, s{sptr+1}, 0xffff")
    a(f"s_mov_b32 s{sbase+2}, {size}")
    a(f"s_mov_b32 s{sbase+3}, 0x00020000")

def kernel_text(name, a, lds_note=""):
    n = a.fix_hazards()
    mv, ms = a.maxreg()
    nv = mv + 1
    body = f""".globl {name}
.p2align 8
.type {name},@function
{name}:
{a.text()}
"""
    desc = f""".p2align 6
.amdhsa_kernel {name}
  .amdhsa_next_free_vgpr {nv}
  .amdhsa_next_free_sgpr {max(ms+1, 16)}
  .amdhsa_accum_offset {(nv+3)//4*4}
  .amdhsa_group_segment_fixed_size 0
  .amdhsa_kernarg_size 104
  .amdhsa_user_sgpr_count 2
  .amdhsa_user_sgpr_kernarg_segment_ptr 1
  .amdhsa_system_sgpr_workgroup_id_x 1
  .amdhsa_float_denorm_mode_32 3
.end_amdhsa_kernel
"""
    print(f"[{name}] vgpr={nv} sgpr={ms+1} nops_inserted={n} ninstr={sum(1 for i in a.items if i.kind not in ('label','dir'))}")
    return body, desc
```

```python
from common import *

CLASS = {('K',3):0, ('Q',3):1, ('K',2):2, ('Q',2):3, ('K',4):3, ('Q',4):2, ('V',0):0, ('V',1):1,
         ('K',0):0, ('K',1):1, ('Q',0):2, ('Q',1):3, ('V',2):0, ('V',3):1, ('V',4):2, ('X',0):3}
POS = {}
_cnt = [0,0,0,0]
for key, cl in CLASS.items():
    POS[key] = cl + 4*_cnt[cl]; _cnt[cl] += 1
assert sorted(POS.values()) == list(range(16))
STRIP = {'Q':0, 'K':1, 'V':2, 'X':0}
INV = {p: k for k, p in POS.items()}
SRCOFF16 = [ (STRIP[INV[p][0]]*1280 + INV[p][1]*16)//16 for p in range(16)]
def quad_slot(strip, head, qi):
    q10 = head*5 + qi
    return POS[(strip, q10 >> 1)], q10 & 1
def phi(mt, j, hh):
    if mt < 2:
        return ('K', mt, 2*hh + j) if j < 2 else ('Q', mt, 2*hh + (j-2))
    if mt == 2:
        if j == 0: return ('K', 0, 4) if hh == 0 else ('Q', 0, 4)
        if j == 1: return ('K', 1, 4) if hh == 0 else ('Q', 1, 4)
        return ('V', 0, 2*(j-2) + hh)
    if j == 0: return ('V', hh, 4)
    if j < 3: return ('V', 1, 2*(j-1) + hh)
    return ('V', 1, 2 + hh)

def wfrag_lane_addr(mt, lane):
    G = lane >> 4; q = lane & 15; r = q >> 2; c = q & 3
    j = 2*(G & 1) + (c >> 1); hh = c & 1
    pos, half = quad_slot(*phi(mt, j, hh))
    return (8*(G >> 1) + r)*256 + ((pos ^ (r << 2))*16) + half*8
for mt in range(4):
    cyc = lds_cycles('tr', [wfrag_lane_addr(mt, l) for l in range(64)])
    assert cyc == 2, (mt, cyc)
def xfrag_lane_addr(lane, ks):
    n = lane & 31; h = lane >> 5
    return n*128 + (((2*ks + h) ^ ((n >> 1) & 7))*16)
for ks in range(4):
    assert lds_cycles('b128', [xfrag_lane_addr(l, ks) for l in range(64)]) == 4

def lane_table(a, vdst, vidx, table, vt, s0):
    for i in range(4):
        w = sum((table[4*i + b] & 0xff) << (8*b) for b in range(4))
        a(f"s_mov_b32 s{s0+i}, {w:#x}")
    a(f"v_lshrrev_b32 v{vt}, 2, v{vidx}")
    a(f"v_mov_b32 v{vdst}, s{s0}")
    for i in range(1, 4):
        a(f"v_cmp_eq_u32 vcc, {i}, v{vt}")
        a(f"v_mov_b32 v{vt+1}, s{s0+i}")
        a(f"v_cndmask_b32 v{vdst}, v{vdst}, v{vt+1}, vcc")
    a(f"v_and_b32 v{vt}, 3, v{vidx}")
    a(f"v_lshlrev_b32 v{vt}, 3, v{vt}")
    a(f"v_lshrrev_b32 v{vdst}, v{vt}, v{vdst}")
    a(f"v_and_b32 v{vdst}, 0xff, v{vdst}")

NST = 10
SLOT = 32768
K1_LDS = 4*SLOT

def gen_k1(name="proj_kernel"):
    a = Asm()
    L = lambda s: f"{name}_{s}"
    a("s_cmp_ge_u32 s2, 256")
    a(f"s_cbranch_scc1 {L('end')}")
    a(f"s_load_dwordx2 s[4:5], s[0:1], {KA['x']}")
    a(f"s_load_dwordx2 s[6:7], s[0:1], {KA['wqkv']}")
    a(f"s_load_dwordx4 s[36:39], s[0:1], {KA['bk']}")
    a(f"s_load_dwordx2 s[40:41], s[0:1], {KA['sk']}")
    a(f"s_load_dwordx2 s[42:43], s[0:1], {KA['gw']}")
    a(f"s_load_dwordx2 s[44:45], s[0:1], {KA['ws']}")
    a("v_lshrrev_b32 v2, 6, v0")
    a("v_and_b32 v1, 63, v0")
    a("v_readfirstlane_b32 s3, v2")
    a("s_and_b32 s46, s2, 7")
    a("s_lshr_b32 s47, s2, 3")
    a("s_and_b32 s48, s47, 1")
    a("s_lshl_b32 s46, s46, 1")
    a("s_add_u32 s46, s46, s48")
    a("s_lshr_b32 s47, s47, 1")
    a("s_waitcnt lgkmcnt(0)")
    srd(a, 8, 4, S*D*2)
    srd(a, 12, 6, D*3*D*2)
    srd(a, 16, 36, S*D*2)
    srd(a, 20, 38, S*D*2)
    srd(a, 24, 40, D*4*2)
    srd(a, 28, 42, D*2)
    srd(a, 32, 44, WS_END)
    a("s_cmp_ge_u32 s3, 4")
    a(f"s_cbranch_scc1 {L('loader')}")

    a("s_cmp_eq_u32 s3, 3")
    a(f"s_cbranch_scc1 {L('gate')}")
    a("v_cmp_gt_u32 vcc, 160, v0")
    a("s_and_saveexec_b64 s[50:51], vcc")
    a(f"s_cbranch_execz {L('prep_done')}")
    a("s_lshr_b32 s52, s2, 3")
    a("s_and_b32 s53, s2, 7")
    a("v_lshrrev_b32 v2, 3, v0")
    a("v_and_b32 v3, 7, v0")
    a("s_mul_i32 s54, s53, 80")
    a("v_lshlrev_b32 v2, 2, v2")
    a("v_add_u32 v2, s54, v2")
    a("s_lshl_b32 s55, s52, 6")
    a("v_lshlrev_b32 v3, 3, v3")
    a("v_add_u32 v3, s55, v3")
    a("v_mul_u32_u24 v4, 1280, v3")
    a("v_lshlrev_b32 v5, 1, v2")
    a("v_add_u32 v4, v4, v5")
    a("v_subrev_u32 v5, 3840, v4")
    a("v_cmp_eq_u32 vcc, 0, v3")
    a("v_mov_b32 v6, 0x80000000")
    a("v_cndmask_b32 v5, v5, v6, vcc")
    a("v_lshlrev_b32 v6, 3, v2")
    a("s_mov_b32 s56, 5120")
    KR = 10
    VR = 32
    SKR = 48
    for r in range(3):
        a(f"buffer_load_dwordx2 v[{KR+2*r}:{KR+2*r+1}], v5, s[16:19], 0 offen offset:{1280*r}")
    for r in range(8):
        so = "0" if r < 4 else "s56"
        a(f"buffer_load_dwordx2 v[{KR+6+2*r}:{KR+7+2*r}], v4, s[16:19], {so} offen offset:{1280*(r%4)}")
    for r in range(8):
        so = "0" if r < 4 else "s56"
        a(f"buffer_load_dwordx2 v[{VR+2*r}:{VR+2*r+1}], v4, s[20:23], {so} offen offset:{1280*(r%4)}")
    a(f"buffer_load_dwordx4 v[{SKR}:{SKR+3}], v6, s[24:27], 0 offen")
    a(f"buffer_load_dwordx4 v[{SKR+4}:{SKR+7}], v6, s[24:27], 0 offen offset:16")
    a(f"v_mul_u32_u24 v7, {URP}, v2")
    a("v_lshlrev_b32 v8, 1, v3")
    a("v_sub_u32 v7, v7, v8")
    a(f"v_add_u32 v7, {WS_UR + 4080}, v7")
    a("s_mov_b32 s57, 0xffff0000")
    a(f"s_mov_b32 s58, {URP}")
    a(f"s_mov_b32 s59, {2*URP}")
    a(f"s_mov_b32 s60, {3*URP}")
    a("s_waitcnt vmcnt(0)")
    KF = 60
    VF = 72
    SF = 80
    OUT = 84
    for c in range(4):
        def unpack(dst, src):
            if c & 1: a(f"v_and_b32 v{dst}, s57, v{src}")
            else: a(f"v_lshlrev_b32 v{dst}, 16, v{src}")
        for r in range(11): unpack(KF + r, KR + 2*r + (c >> 1))
        for r in range(8): unpack(VF + r, VR + 2*r + (c >> 1))
        a(f"v_lshlrev_b32 v{SF}, 16, v{SKR+2*c}")
        a(f"v_and_b32 v{SF+1}, s57, v{SKR+2*c}")
        a(f"v_lshlrev_b32 v{SF+2}, 16, v{SKR+2*c+1}")
        a(f"v_and_b32 v{SF+3}, s57, v{SKR+2*c+1}")
        for t in range(8):
            a(f"v_mul_f32 v{OUT+t}, v{KF+t}, v{SF+3}")
            a(f"v_fmac_f32 v{OUT+t}, v{KF+t+1}, v{SF+2}")
            a(f"v_fmac_f32 v{OUT+t}, v{KF+t+2}, v{SF+1}")
            a(f"v_fmac_f32 v{OUT+t}, v{KF+t+3}, v{SF}")
            a(f"v_mul_f32 v{OUT+t}, v{OUT+t}, v{VF+t}")
        PK = 92 + 4*(c & 1)
        for i in range(4):
            a(f"v_cvt_pk_bf16_f32 v{PK+i}, v{OUT+7-2*i}, v{OUT+6-2*i}")
        so = ["0", "s58", "s59", "s60"][c]
        a(f"buffer_store_dwordx4 v[{PK}:{PK+3}], v7, s[32:35], {so} offen")
    a("v_cmp_eq_u32 vcc, 0, v3")
    a("s_and_saveexec_b64 s[62:63], vcc")
    a(f"s_cbranch_execz {L('prep_done')}")
    for i in range(4): a(f"v_mov_b32 v{100+i}, 0")
    for c in range(4):
        so = ["0", "s58", "s59", "s60"][c]
        a(f"buffer_store_dwordx4 v[100:103], v7, s[32:35], {so} offen offset:16")
    a.label(L('prep_done'))
    a("s_mov_b64 exec, -1")
    a(f"s_branch {L('compute')}")
    a.label(L('gate'))
    a("v_lshrrev_b32 v2, 3, v1")
    a("s_lshl_b32 s52, s2, 3")
    a("v_add_u32 v2, s52, v2")
    a("v_and_b32 v3, 7, v1")
    a("v_mul_u32_u24 v4, 160, v3")
    a("v_mul_u32_u24 v5, 1280, v2")
    a("v_add_u32 v5, v5, v4")
    for i in range(10):
        a(f"buffer_load_dwordx4 v[{10+4*i}:{13+4*i}], v5, s[8:11], 0 offen offset:{16*i}")
    for i in range(10):
        a(f"buffer_load_dwordx4 v[{50+4*i}:{53+4*i}], v4, s[28:31], 0 offen offset:{16*i}")
    a("s_mov_b32 s57, 0xffff0000")
    a("v_mov_b32 v6, 0")
    a("v_mov_b32 v7, 0")
    a("s_waitcnt vmcnt(0)")
    for i in range(40):
        a(f"v_lshlrev_b32 v90, 16, v{10+i}")
        a(f"v_lshlrev_b32 v91, 16, v{50+i}")
        a(f"v_and_b32 v92, s57, v{10+i}")
        a(f"v_and_b32 v93, s57, v{50+i}")
        a("v_fmac_f32 v6, v90, v91")
        a("v_fmac_f32 v7, v92, v93")
    a("v_add_f32 v6, v6, v7")
    a("v_add_f32_dpp v6, v6, v6 quad_perm:[1,0,3,2] row_mask:0xf bank_mask:0xf")
    a("v_add_f32_dpp v6, v6, v6 quad_perm:[2,3,0,1] row_mask:0xf bank_mask:0xf")
    a("v_add_f32_dpp v6, v6, v6 row_half_mirror row_mask:0xf bank_mask:0xf")
    a(f"v_mul_f32 v6, {f32bits(-math.log2(math.e)):#x}, v6")
    a("v_exp_f32 v6, v6")
    a("v_add_f32 v6, 1.0, v6")
    a("v_rcp_f32 v6, v6")
    a("v_lshlrev_b32 v2, 2, v2")
    a(f"v_add_u32 v2, {WS_G}, v2")
    a("v_cmp_eq_u32 vcc, 0, v3")
    a("s_and_saveexec_b64 s[50:51], vcc")
    a("buffer_store_dword v6, v2, s[32:35], 0 offen")
    a("s_mov_b64 exec, -1")

    a.label(L('compute'))
    ACC = 64
    FA = [[8, 12], [24, 28]]
    FB = [[16, 20], [32, 36]]
    AW = [40, 41, 42, 43]
    AX = [44, 45, 46, 47, 48, 49, 50, 51]
    a("s_lshr_b32 s52, s3, 1")
    a("s_and_b32 s53, s3, 1")
    a("v_and_b32 v2, 3, v1")
    a("v_bfe_u32 v3, v1, 4, 1")
    a("v_lshl_add_u32 v2, v3, 2, v2")
    a("v_bfe_u32 v4, v1, 2, 2")
    a("v_lshrrev_b32 v5, 5, v1")
    a("v_lshl_add_u32 v5, v5, 3, v4")
    a("v_lshlrev_b32 v5, 8, v5")
    a("v_lshlrev_b32 v4, 6, v4")
    def tab(mt):
        t = []
        for idx8 in range(8):
            j = 2*(idx8 >> 2) + ((idx8 & 3) >> 1); hh = idx8 & 1
            pos, half = quad_slot(*phi(mt, j, hh))
            t.append(pos*2 + half)
        return t
    a("s_lshl_b32 s54, s52, 3")
    a("v_add_u32 v2, s54, v2")
    for mi in range(2):
        lane_table(a, 6, 2, tab(mi) + tab(2 + mi), 52, 56)
        a("v_lshlrev_b32 v6, 3, v6")
        a("v_xor_b32 v6, v6, v4")
        a("v_add_u32 v6, v6, v5")
        a(f"v_add_u32 v{AW[mi]}, 16384, v6")
        a(f"v_add_u32 v{AW[2+mi]}, {16384+65536}, v6")
    a("v_and_b32 v2, 31, v1")
    a("v_lshrrev_b32 v3, 5, v1")
    a("v_bfe_u32 v4, v2, 1, 3")
    a("v_xor_b32 v3, v3, v4")
    a("v_lshlrev_b32 v3, 4, v3")
    a("v_lshl_add_u32 v3, v2, 7, v3")
    a("s_lshl_b32 s54, s53, 13")
    a("v_add_u32 v3, s54, v3")
    for ks in range(4):
        a(f"v_xor_b32 v{AX[ks]}, {32*ks}, v3")
        a(f"v_add_u32 v{AX[4+ks]}, 65536, v{AX[ks]}")
    for i in range(64): a(f"v_mov_b32 v{ACC+i}, 0")
    def reads(st, ks, fs):
        slot = st % 4
        hi = slot >= 2
        so = (slot & 1)*SLOT
        R = []
        for mi in range(2):
            ad = AW[2*hi + mi]
            R.append(f"ds_read_b64_tr_b16 v[{FA[fs][mi]}:{FA[fs][mi]+1}], v{ad} offset:{so + ks*4096}")
            R.append(f"ds_read_b64_tr_b16 v[{FA[fs][mi]+2}:{FA[fs][mi]+3}], v{ad} offset:{so + ks*4096 + 1024}")
        for ni in range(2):
            R.append(f"ds_read_b128 v[{FB[fs][ni]}:{FB[fs][ni]+3}], v{AX[4*hi+ks]} offset:{so + ni*4096}")
        return R
    def mfmas(fs):
        M = []
        for mi in range(2):
            for ni in range(2):
                c = ACC + 16*(2*mi + ni)
                M.append(f"v_mfma_f32_32x32x16_bf16 v[{c}:{c+15}], v[{FA[fs][mi]}:{FA[fs][mi]+3}], v[{FB[fs][ni]}:{FB[fs][ni]+3}], v[{c}:{c+15}]")
        return M
    a("s_barrier")
    for r in reads(0, 0, 0): a(r)
    step = 0
    for st in range(NST):
        for ks in range(4):
            fs = step & 1
            last = (st == NST-1 and ks == 3)
            a("s_waitcnt lgkmcnt(0)")
            if ks == 3 and not last:
                a("s_barrier")
            nxt = [] if last else (reads(st, ks+1, 1-fs) if ks < 3 else reads(st+1, 0, 1-fs))
            M = mfmas(fs)
            for i in range(4):
                if i == 0:
                    for r in nxt[0:2]: a(r)
                a(M[i])
                if i < 2:
                    for r in nxt[2+2*i:4+2*i]: a(r)
            step += 1
    a(f"s_mov_b32 s54, {f32bits(QSCALE):#x}")
    a("s_lshl_b32 s55, s47, 2")
    a("s_lshl_b32 s56, s53, 1")
    a("s_add_u32 s55, s55, s56")
    a("s_lshl_b32 s56, s46, 7")
    a("s_add_u32 s55, s55, s56")
    a("s_cmp_eq_u32 s52, 1")
    a(f"s_cbranch_scc1 {L('epi2')}")
    a("v_lshlrev_b32 v2, 4, v1")
    a(f"s_mul_i32 s56, s55, {KVT}")
    a(f"s_mul_i32 s57, s55, {QT}")
    a(f"s_add_u32 s57, s57, {WS_Q}")
    for mi in range(2):
        for ni in range(2):
            c = ACC + 16*(2*mi + ni)
            T = 8 + 8*((2*mi+ni) & 1)
            for i in range(4):
                a(f"v_cvt_pk_bf16_f32 v{T+i}, v{c+2*i}, v{c+2*i+1}")
            for i in range(8):
                a(f"v_mul_f32 v{c+8+i}, s54, v{c+8+i}")
            for i in range(4):
                a(f"v_cvt_pk_bf16_f32 v{T+4+i}, v{c+8+2*i}, v{c+8+2*i+1}")
            a(f"s_add_u32 s58, s56, {(mi*64+ni)*KVT}")
            a(f"s_add_u32 s59, s57, {(mi*64+ni)*QT}")
            a(f"buffer_store_dwordx4 v[{T}:{T+3}], v2, s[32:35], s58 offen")
            a(f"buffer_store_dwordx4 v[{T+4}:{T+7}], v2, s[32:35], s59 offen")
    a("s_endpgm")
    a.label(L('epi2'))
    a("v_and_b32 v2, 31, v1")
    a("v_lshrrev_b32 v3, 5, v1")
    a("v_cmp_eq_u32 vcc, 1, v3")
    a(f"v_mov_b32 v4, {KVT}")
    a(f"v_mov_b32 v5, {QT}")
    a("v_cndmask_b32 v4, v4, v5, vcc")
    a(f"v_mov_b32 v5, {WS_KV + 1024}")
    a(f"v_mov_b32 v6, {WS_Q + 1024}")
    a("v_cndmask_b32 v5, v5, v6, vcc")
    a("v_lshl_add_u32 v5, v2, 3, v5")
    a("v_mov_b32 v6, 1.0")
    a("v_mov_b32 v7, s54")
    a("v_cndmask_b32 v6, v6, v7, vcc")
    a("v_mul_lo_u32 v7, v4, s55")
    a("v_add_u32 v5, v5, v7")
    a("v_lshlrev_b32 v7, 6, v4")
    VP = 96
    a("s_lshl_b32 s56, s53, 13")
    a(f"v_mul_u32_u24 v8, {VP}, v2")
    a("v_add_u32 v8, s56, v8")
    a("v_lshl_add_u32 v9, v3, 3, v8")
    a(f"v_mul_u32_u24 v10, 40, v3")
    a("v_add_u32 v10, v10, v8")
    for ni in range(2):
        c2 = ACC + 16*(0 + ni)
        c3 = ACC + 16*(2 + ni)
        for i in range(8):
            a(f"v_mul_f32 v{c2+i}, v6, v{c2+i}")
        T = 12 + 16*ni
        for i in range(8):
            a(f"v_cvt_pk_bf16_f32 v{T+i}, v{c2+2*i}, v{c2+2*i+1}")
        for i in range(6):
            a(f"v_cvt_pk_bf16_f32 v{T+8+i}, v{c3+2*i}, v{c3+2*i+1}")
        if ni == 0:
            a("v_add_u32 v11, v5, v7")
            a(f"buffer_store_dwordx2 v[{T}:{T+1}], v5, s[32:35], 0 offen")
            a(f"buffer_store_dwordx2 v[{T+2}:{T+3}], v11, s[32:35], 0 offen")
        else:
            a("v_add_u32 v44, v5, v4")
            a("v_add_u32 v45, v11, v4")
            a(f"buffer_store_dwordx2 v[{T}:{T+1}], v44, s[32:35], 0 offen")
            a(f"buffer_store_dwordx2 v[{T+2}:{T+3}], v45, s[32:35], 0 offen")
        o = ni*32*VP
        a(f"ds_write_b64 v9, v[{T+4}:{T+5}] offset:{o}")
        a(f"ds_write_b64 v9, v[{T+6}:{T+7}] offset:{o+16}")
        a(f"ds_write_b64 v10, v[{T+8}:{T+9}] offset:{o+32}")
        a(f"ds_write_b64 v9, v[{T+10}:{T+11}] offset:{o+40}")
        a(f"ds_write_b64 v9, v[{T+12}:{T+13}] offset:{o+56}")
    a("v_lshrrev_b32 v2, 4, v1")
    a("v_lshrrev_b32 v3, 1, v2")
    a("v_and_b32 v4, 1, v2")
    a("v_bfe_u32 v5, v1, 2, 2")
    a("v_lshl_add_u32 v5, v4, 2, v5")
    a("v_lshl_add_u32 v5, v3, 4, v5")
    a(f"v_mul_u32_u24 v5, {VP}, v5")
    a("v_and_b32 v6, 3, v1")
    a("v_lshl_add_u32 v5, v6, 3, v5")
    a("v_add_u32 v5, s56, v5")
    a("v_mul_u32_u24 v6, 640, v3")
    a("v_mul_u32_u24 v7, 320, v4")
    a("v_add_u32 v6, v6, v7")
    a("v_and_b32 v7, 15, v1")
    a("v_lshl_add_u32 v6, v7, 4, v6")
    a(f"s_mul_i32 s57, s55, {KVT}")
    a("s_add_u32 s57, s57, 1280")
    a("v_add_u32 v6, s57, v6")
    a("v_cmp_gt_u32 vcc, 4, v7")
    a(f"v_mov_b32 v8, {64*KVT - 64}")
    a("v_mov_b32 v9, 256")
    a("v_cndmask_b32 v8, v8, v9, vcc")
    a("v_add_u32 v8, v8, v6")
    a(f"v_add_u32 v9, {64*KVT + 12*16}, v6")
    a("v_cmp_gt_u32 s[60:61], 8, v7")
    a("s_waitcnt lgkmcnt(0)")
    for ni in range(2):
        for cg in range(3):
            T = 12 + 4*(3*ni + cg)
            o = ni*32*VP + cg*32
            a(f"ds_read_b64_tr_b16 v[{T}:{T+1}], v5 offset:{o}")
            a(f"ds_read_b64_tr_b16 v[{T+2}:{T+3}], v5 offset:{o + 8*VP}")
    a(f"s_mov_b32 s58, {KVT}")
    a("s_waitcnt lgkmcnt(0)")
    for ni in range(2):
        so = "0" if ni == 0 else "s58"
        for cg in range(2):
            T = 12 + 4*(3*ni + cg)
            a(f"buffer_store_dwordx4 v[{T}:{T+3}], v{[6,8][cg]}, s[32:35], {so} offen")
    a("s_mov_b64 exec, s[60:61]")
    for ni in range(2):
        so = "0" if ni == 0 else "s58"
        T = 12 + 4*(3*ni + 2)
        a(f"buffer_store_dwordx4 v[{T}:{T+3}], v9, s[32:35], {so} offen")
    a("s_endpgm")

    a.label(L('loader'))
    a("s_sub_u32 s3, s3, 4")
    a("v_lshrrev_b32 v2, 3, v1")
    a("v_mul_u32_u24 v2, 1280, v2")
    a("v_and_b32 v3, 7, v1")
    a("v_lshrrev_b32 v4, 4, v1")
    a("v_xor_b32 v5, v3, v4")
    a("v_lshl_add_u32 v10, v5, 4, v2")
    a("v_xor_b32 v5, 4, v5")
    a("v_lshl_add_u32 v11, v5, 4, v2")
    a("v_and_b32 v3, 15, v1")
    a("v_lshlrev_b32 v5, 2, v4")
    a("v_xor_b32 v3, v3, v5")
    lane_table(a, 12, 3, SRCOFF16, 6, 56)
    a("v_lshlrev_b32 v12, 4, v12")
    a("v_mul_u32_u24 v4, 3840, v4")
    a("v_add_u32 v12, v12, v4")
    a("s_mul_i32 s52, s47, 163840")
    a("s_mul_i32 s53, s3, 40960")
    a("s_add_u32 s52, s52, s53")
    a("s_mul_i32 s53, s46, 80")
    a(f"s_mul_i32 s54, s3, {4*4*3840}")
    a("s_add_u32 s53, s53, s54")
    a("s_lshl_b32 s54, s3, 12")
    def issue(st):
        slot = (st % 4)*SLOT
        for i in range(4):
            a(f"s_add_u32 m0, s54, {slot + i*1024}")
            a(f"s_add_u32 s55, s52, {st*128 + i*10240}")
            a(f"buffer_load_dwordx4 v{10 + (i & 1)}, s[8:11], s55 offen lds")
            a(f"s_add_u32 m0, s54, {slot + 16384 + i*1024}")
            a(f"s_add_u32 s55, s53, {st*64*3840 + i*4*3840}")
            a(f"buffer_load_dwordx4 v12, s[12:15], s55 offen lds")
    for st in range(4): issue(st)
    for s in range(NST):
        issued = max(3, min(NST-1, s+2))
        a(f"s_waitcnt vmcnt({8*(issued - s)})")
        a("s_barrier")
        if 1 <= s <= NST-4: issue(s+3)
    a.label(L('end'))
    a("s_endpgm")
    return kernel_text(name, a)
if __name__ == "__main__":
    b, d = gen_k1()
```

```python
from common import *
K2_BLOCK = 768
STG = 20480
RING = 4*STG
HA0, HA1, UB0, UB1 = 0, 4224, 8448, 13064
CIN = 17664
CINB = [RING, RING + CIN]
SCR = RING + 2*CIN
FLAGS = SCR + 24576
K2_LDS = FLAGS + 256
XCH = STG
XW = 3328

def a_lane(l):
    m = l & 15; g = l >> 4
    return (HA0 + 2*(2*m + 8*g)) if m % 2 == 0 else (HA1 + 2*(2*m - 2 + 8*g))
def b_lane(l, i):
    n = l & 15; g = l >> 4; p = n >> 1; o = n & 1
    c0 = 28 + 4*(i - p) + g
    c0s = c0 ^ ((c0 >> 3) & 2)
    return (UB1 if o else UB0) + 16*c0s
assert lds_cycles('b64', [a_lane(l) for l in range(64)]) == 2
assert lds_cycles('b64', [a_lane(l)+8 for l in range(64)]) == 2
for i in range(8):
    assert lds_cycles('b64', [b_lane(l, i) for l in range(64)]) == 2, i
    assert lds_cycles('b64', [b_lane(l, i)+8 for l in range(64)]) == 2, i

class VmQ:
    def __init__(self, a): self.a = a; self.q = []
    def issue(self, tag, text): self.a(text); self.q.append(tag)
    def wait(self, tags):
        idx = max([i for i, t in enumerate(self.q) if t in tags], default=-1)
        if idx < 0: return
        n = len(self.q) - 1 - idx
        assert n <= 63
        self.a(f"s_waitcnt vmcnt({n})")
        self.q = self.q[idx+1:]

def gen_k2(name="attn_kernel", do_conv=True):
    a = Asm()
    L = lambda s: f"{name}_{s}"
    a("s_cmp_ge_u32 s2, 256")
    a(f"s_cbranch_scc1 {L('end')}")
    a(f"s_load_dwordx2 s[4:5], s[0:1], {KA['ws']}")
    a(f"s_load_dwordx4 s[36:39], s[0:1], {KA['ssmk']}")
    a("v_lshrrev_b32 v2, 6, v0")
    a("v_and_b32 v1, 63, v0")
    a("v_readfirstlane_b32 s3, v2")
    a("s_and_b32 s46, s2, 7")
    a("s_lshr_b32 s47, s2, 3")
    a("s_and_b32 s48, s47, 3")
    a("s_lshl_b32 s46, s46, 2")
    a("s_add_u32 s46, s46, s48")
    a("s_lshr_b32 s47, s47, 2")
    a("s_waitcnt lgkmcnt(0)")
    srd(a, 8, 4, WS_END)
    a("s_cmp_ge_u32 s3, 8")
    a(f"s_cbranch_scc1 {L('aux')}")

    QA = [2, 6]; QB = [10, 12]
    KAr = [14, 18]; KBr = [22, 24]; V1 = 26; V2 = 30
    P = [34, 42]
    aK, aKB, aV = 50, 51, 52
    bK, bKB, bV = 53, 54, 55
    NEGM = [56, 57]
    T0 = 58
    O = [64, 80]
    SS = [[96, 112], [128, 144]]
    a("s_lshr_b32 s48, s3, 1")
    a("s_and_b32 s49, s3, 1")
    a("s_mov_b32 s50, -1")
    a("s_mov_b32 s51, 0")
    a("s_mov_b32 s52, 0x000fffff")
    a("s_mov_b32 s53, 0x000fffff")
    a("s_mov_b32 s54, 0")
    a("s_mov_b32 s55, -1")
    a("s_lshl_b32 s56, s46, 6")
    a("s_lshl_b32 s57, s47, 3")
    a("s_add_u32 s56, s56, s57")
    a("s_lshl_b32 s57, s48, 1")
    a("s_add_u32 s56, s56, s57")
    a(f"s_mul_i32 s56, s56, {QT}")
    a(f"s_add_u32 s56, s56, {WS_Q}")
    a("v_lshlrev_b32 v58, 4, v1")
    a("v_and_b32 v59, 31, v1")
    a("v_lshlrev_b32 v59, 3, v59")
    for r in range(10, 14): a(f"v_mov_b32 v{r}, 0")
    for q in range(2):
        a(f"buffer_load_dwordx4 v[{QA[q]}:{QA[q]+3}], v58, s[8:11], s56 offen offset:{q*QT}")
    a("s_mov_b64 exec, s[50:51]")
    for q in range(2):
        a(f"buffer_load_dwordx2 v[{QB[q]}:{QB[q]+1}], v59, s[8:11], s56 offen offset:{q*QT + 1024}")
    a("s_mov_b64 exec, -1")
    a(f"s_mul_i32 s57, s49, {4*KVT}")
    a(f"v_add_u32 v{bK}, s57, v58")
    a(f"v_add_u32 v{bKB}, s57, v59")
    a(f"v_add_u32 v{bKB}, 1024, v{bKB}")
    a("v_lshrrev_b32 v60, 5, v1")
    a("v_mul_u32_u24 v60, 320, v60")
    a("v_and_b32 v61, 31, v1")
    a("v_min_u32 v61, 19, v61")
    a("v_lshl_add_u32 v60, v61, 4, v60")
    a(f"v_add_u32 v60, 1280, v60")
    a(f"v_add_u32 v{bV}, s57, v60")
    a(f"v_mov_b32 v{aK}, v{bK}")
    a(f"v_mov_b32 v{aKB}, v{bKB}")
    a(f"v_mov_b32 v{aV}, v{bV}")
    def init_consts():
        a("v_and_b32 v61, 31, v1")
        a("v_cmp_eq_u32 vcc, 20, v61")
        a("v_mov_b32 v62, 0")
        a("v_mov_b32 v63, 0x3f803f80")
        a("v_cndmask_b32 v62, v62, v63, vcc")
        for r in list(range(V1, V1+4)) + list(range(V2, V2+4)): a(f"v_mov_b32 v{r}, v62")
        for kb in KBr:
            a(f"v_mov_b32 v{kb}, 0x3f80")
            a(f"v_mov_b32 v{kb+1}, 0")
    init_consts()
    for q in range(2):
        for i in range(16): a(f"v_mov_b32 v{O[q]+i}, 0")
    for i in range(8): a(f"v_mov_b32 v{P[1]+i}, 0")
    def rdKA(buf, tile, addr=aK): return f"ds_read_b128 v[{KAr[buf]}:{KAr[buf]+3}], v{addr} offset:{tile*KVT}"
    def rdKB(buf, tile, addr=aKB): return ["s_mov_b64 exec, s[50:51]", f"ds_read_b64 v[{KBr[buf]}:{KBr[buf]+1}], v{addr} offset:{tile*KVT}", "s_mov_b64 exec, -1"]
    def rdV(reg, tile, off): return ["s_mov_b64 exec, s[52:53]", f"ds_read_b128 v[{reg}:{reg+3}], v{aV} offset:{tile*KVT + off}", "s_mov_b64 exec, -1"]
    def qk_a(sb, q, kb): return f"v_mfma_f32_32x32x16_bf16 v[{SS[sb][q]}:{SS[sb][q]+15}], v[{KAr[kb]}:{KAr[kb]+3}], v[{QA[q]}:{QA[q]+3}], 0"
    def qk_b(sb, q, kb): return f"v_mfma_f32_32x32x8_bf16 v[{SS[sb][q]}:{SS[sb][q]+15}], v[{KBr[kb]}:{KBr[kb]+1}], v[{QB[q]}:{QB[q]+1}], v[{SS[sb][q]}:{SS[sb][q]+15}]"
    def pv(q, half):
        vv = V1 if half == 0 else V2
        return f"v_mfma_f32_32x32x16_bf16 v[{O[q]}:{O[q]+15}], v[{vv}:{vv+3}], v[{P[q]+4*half}:{P[q]+4*half+3}], v[{O[q]}:{O[q]+15}]"
    def set_negm_from(q, vmax):
        a(f"v_mov_b32 v{T0+1}, v{vmax}")
        a(f"v_permlane32_swap_b32 v{vmax}, v{T0+1}")
        a(f"v_max_f32 v{vmax}, v{vmax}, v{T0+1}")
        a(f"v_sub_f32 v{vmax}, 0, v{vmax}")
        a(f"v_cvt_pk_bf16_f32 v{vmax}, v{vmax}, 0")
        a(f"v_lshlrev_b32 v{NEGM[q]}, 16, v{vmax}")
        a("s_mov_b64 exec, s[54:55]")
        a(f"v_mov_b32 v{QB[q]}, v{vmax}")
        a("s_mov_b64 exec, -1")
    def max16(dst, base, init=None):
        regs = [base+i for i in range(16)]
        if init is None:
            a(f"v_max3_f32 v{dst}, v{regs[0]}, v{regs[1]}, v{regs[2]}")
            rest = regs[3:]
        else:
            rest = regs
        while len(rest) >= 2:
            a(f"v_max3_f32 v{dst}, v{dst}, v{rest[0]}, v{rest[1]}"); rest = rest[2:]
        if rest: a(f"v_max_f32 v{dst}, v{dst}, v{rest[0]}")
    a("s_barrier")
    a(rdKA(0, 0))
    for x in rdKB(0, 0): a(x)
    a(rdKA(1, 1))
    for x in rdKB(1, 1): a(x)
    for x in rdV(V1, 0, 0): a(x)
    a("s_waitcnt vmcnt(0) lgkmcnt(3)")
    for q in range(2):
        a(qk_a(0, q, 0)); a(qk_b(0, q, 0))
    for q in range(2):
        max16(T0, SS[0][q])
        set_negm_from(q, T0)
    for q in range(2):
        a(qk_a(0, q, 0)); a(qk_b(0, q, 0))
    a("s_mov_b32 s58, 0")
    a("s_mov_b32 s59, 0")
    a.label(L('loop'))
    a(f"s_add_u32 s60, s59, {STG}")
    a(f"s_cmp_eq_u32 s60, {RING}")
    a("s_cselect_b32 s60, 0, s60")
    for it in range(4):
        cur = it & 1; nxt = 1 - cur
        def exps(g):
            q = g >> 2; b = SS[cur][q] + 4*(g & 3)
            for i in range(4): a(f"v_exp_f32 v{b+i}, v{b+i}")
        def cvts(g):
            q = g >> 2; b = SS[cur][q] + 4*(g & 3); p = P[q] + 2*(g & 3)
            a(f"v_cvt_pk_bf16_f32 v{p}, v{b}, v{b+1}")
            a(f"v_cvt_pk_bf16_f32 v{p+1}, v{b+2}, v{b+3}")
        a(pv(1, 1))
        for x in rdV(V2, it, 640): a(x)
        exps(0)
        a("s_waitcnt lgkmcnt(2)")
        a(qk_a(nxt, 0, nxt))
        exps(1); cvts(0)
        a(qk_b(nxt, 0, nxt))
        if it == 2:
            a("s_barrier")
            a(f"v_add_u32 v{aK}, s60, v{bK}")
            a(f"v_add_u32 v{aKB}, s60, v{bKB}")
        a(rdKA(cur, (it+2) & 3))
        for x in rdKB(cur, (it+2) & 3): a(x)
        exps(2); cvts(1)
        a("s_waitcnt lgkmcnt(3)")
        a(pv(0, 0))
        exps(3); cvts(2)
        a(qk_a(nxt, 1, nxt))
        exps(4); cvts(3)
        a("s_waitcnt lgkmcnt(2)")
        a(pv(0, 1))
        exps(5); cvts(4)
        a(qk_b(nxt, 1, nxt))
        exps(6); cvts(5)
        a(pv(1, 0))
        if it == 3:
            a(f"v_add_u32 v{aV}, s60, v{bV}")
        for x in rdV(V1, (it+1) & 3, 0): a(x)
        exps(7); cvts(6); cvts(7)
    a("s_mov_b32 s59, s60")
    a("s_add_u32 s58, s58, 1")
    a("s_cmp_lt_u32 s58, 8")
    a(f"s_cbranch_scc1 {L('loop')}")
    a(pv(1, 1))
    a("s_mov_b32 s61, 0")
    a.label(L('publish'))
    a("s_waitcnt lgkmcnt(0)")
    a(f"v_mov_b32 v{T0}, 0")
    for q in range(2):
        for i in range(12):
            a(f"v_add_f32 v{T0}, v{T0}, abs(v{O[q]+i})")
    a(f"s_mov_b32 s62, {f32bits(2.0**100):#x}")
    a(f"v_cmp_nlt_f32 vcc, v{T0}, s62")
    a("s_cmp_lg_u64 vcc, 0")
    a("s_cselect_b32 s62, 1, 0")
    a(f"v_mov_b32 v{T0}, s62")
    a("s_lshl_b32 s63, s3, 2")
    a(f"s_add_u32 s63, s63, {FLAGS}")
    a(f"v_mov_b32 v{T0+1}, s63")
    a(f"ds_write_b32 v{T0+1}, v{T0}")
    a(f"s_mul_i32 s63, s3, {XW}")
    a(f"s_add_u32 s63, s63, {XCH}")
    a(f"v_lshlrev_b32 v{T0+2}, 4, v1")
    a(f"v_add_u32 v{T0+2}, s63, v{T0+2}")
    a(f"v_lshlrev_b32 v{T0+3}, 2, v1")
    a(f"v_add_u32 v{T0+3}, s63, v{T0+3}")
    a("s_cmp_eq_u32 s49, 0")
    a(f"s_cbranch_scc1 {L('send1')}")
    for i in range(3): a(f"ds_write_b128 v{T0+2}, v[{O[0]+4*i}:{O[0]+4*i+3}] offset:{1024*i}")
    a(f"ds_write_b32 v{T0+3}, v{NEGM[0]} offset:3072")
    a("s_waitcnt lgkmcnt(0)")
    for i in range(12): a(f"v_mov_b32 v{SS[0][0]+i}, v{O[1]+i}")
    a(f"v_mov_b32 v{SS[0][0]+12}, v{NEGM[1]}")
    a(f"s_branch {L('sent')}")
    a.label(L('send1'))
    for i in range(3): a(f"ds_write_b128 v{T0+2}, v[{O[1]+4*i}:{O[1]+4*i+3}] offset:{1024*i}")
    a(f"ds_write_b32 v{T0+3}, v{NEGM[1]} offset:3072")
    a("s_waitcnt lgkmcnt(0)")
    for i in range(12): a(f"v_mov_b32 v{SS[0][0]+i}, v{O[0]+i}")
    a(f"v_mov_b32 v{SS[0][0]+12}, v{NEGM[0]}")
    a.label(L('sent'))
    a("s_barrier")
    OWN = SS[0][0]; OTH = SS[0][1]
    a(f"v_and_b32 v{T0}, 7, v1")
    a(f"v_lshlrev_b32 v{T0}, 2, v{T0}")
    a(f"v_add_u32 v{T0}, {FLAGS}, v{T0}")
    a(f"ds_read_b32 v{T0}, v{T0}")
    a("s_xor_b32 s63, s3, 1")
    a(f"s_mul_i32 s63, s63, {XW}")
    a(f"s_add_u32 s63, s63, {XCH}")
    a(f"v_lshlrev_b32 v{T0+2}, 4, v1")
    a(f"v_add_u32 v{T0+2}, s63, v{T0+2}")
    a(f"v_lshlrev_b32 v{T0+3}, 2, v1")
    a(f"v_add_u32 v{T0+3}, s63, v{T0+3}")
    for i in range(3): a(f"ds_read_b128 v[{OTH+4*i}:{OTH+4*i+3}], v{T0+2} offset:{1024*i}")
    a(f"ds_read_b32 v{OTH+12}, v{T0+3} offset:3072")
    a("s_waitcnt lgkmcnt(0)")
    a(f"v_cmp_ne_u32 vcc, 0, v{T0}")
    a("s_cmp_lg_u64 vcc, 0")
    a("s_cselect_b32 s62, 1, 0")
    a("s_andn2_b32 s62, s62, s61")
    a("s_cmp_lg_u32 s62, 0")
    a(f"s_cbranch_scc1 {L('fallback')}")
    a(f"v_min_f32 v{T0}, v{OWN+12}, v{OTH+12}")
    a(f"v_sub_f32 v{T0+1}, v{T0}, v{OWN+12}")
    a(f"v_sub_f32 v{T0+2}, v{T0}, v{OTH+12}")
    a(f"v_exp_f32 v{T0+1}, v{T0+1}")
    a(f"v_exp_f32 v{T0+2}, v{T0+2}")
    for i in range(12):
        a(f"v_mul_f32 v{OWN+i}, v{OWN+i}, v{T0+1}")
        a(f"v_fmac_f32 v{OWN+i}, v{OTH+i}, v{T0+2}")
    a(f"v_mov_b32 v{T0}, v{OWN+8}")
    a(f"v_mov_b32 v{T0+1}, v{OWN+8}")
    a(f"v_permlane32_swap_b32 v{T0}, v{T0+1}")
    a(f"v_rcp_f32 v{T0+1}, v{T0+1}")
    for i in range(12):
        a(f"v_mul_f32 v{OWN+i}, v{OWN+i}, v{T0+1}")
    for i in range(6):
        a(f"v_cvt_pk_bf16_f32 v{OTH+i}, v{OWN+2*i}, v{OWN+2*i+1}")
    a("s_lshl_b32 s62, s47, 8")
    a("s_lshl_b32 s63, s48, 6")
    a("s_add_u32 s62, s62, s63")
    a("s_lshl_b32 s63, s49, 5")
    a("s_add_u32 s62, s62, s63")
    a("s_mul_i32 s62, s62, 1280")
    a("s_mul_i32 s63, s46, 40")
    a("s_add_u32 s62, s62, s63")
    a(f"s_add_u32 s62, s62, {WS_O}")
    a(f"v_and_b32 v{T0}, 31, v1")
    a(f"v_mul_u32_u24 v{T0}, 1280, v{T0}")
    a(f"v_lshrrev_b32 v{T0+1}, 5, v1")
    a(f"v_lshl_add_u32 v{T0}, v{T0+1}, 3, v{T0}")
    a(f"buffer_store_dwordx2 v[{OTH}:{OTH+1}], v{T0}, s[8:11], s62 offen")
    a(f"buffer_store_dwordx2 v[{OTH+2}:{OTH+3}], v{T0}, s[8:11], s62 offen offset:16")
    a("s_mov_b64 exec, s[50:51]")
    a(f"buffer_store_dwordx2 v[{OTH+4}:{OTH+5}], v{T0}, s[8:11], s62 offen offset:32")
    a("s_endpgm")
    a.label(L('fallback'))
    a("s_mov_b32 s61, 1")
    init_consts()
    a("s_mov_b64 exec, s[54:55]")
    for q in range(2): a(f"v_mov_b32 v{QB[q]}, 0")
    a("s_mov_b64 exec, -1")
    a(f"s_mul_i32 s62, s46, {64*KVT}")
    a(f"s_mul_i32 s63, s49, {32*KVT}")
    a("s_add_u32 s62, s62, s63")
    a(f"s_mul_i32 s63, s49, {4*KVT}")
    a(f"v_subrev_u32 v{aK}, s63, v{bK}")
    a(f"v_subrev_u32 v{aKB}, s63, v{bKB}")
    a(f"v_subrev_u32 v{aV}, s63, v{bV}")
    a(f"v_mov_b32 v{T0+2}, 0xff800000")
    a(f"v_mov_b32 v{T0+3}, 0xff800000")
    a("s_mov_b32 s58, 0")
    a("s_mov_b32 s59, s62")
    a.label(L('fb1'))
    a(f"buffer_load_dwordx4 v[{KAr[0]}:{KAr[0]+3}], v{aK}, s[8:11], s59 offen")
    a("s_mov_b64 exec, s[50:51]")
    a(f"buffer_load_dwordx2 v[{KBr[0]}:{KBr[0]+1}], v{aKB}, s[8:11], s59 offen")
    a("s_mov_b64 exec, -1")
    a("s_waitcnt vmcnt(0)")
    for q in range(2):
        a(qk_a(0, q, 0)); a(qk_b(0, q, 0))
    for q in range(2):
        max16(T0+2+q, SS[0][q], init=True)
    a(f"s_add_u32 s59, s59, {KVT}")
    a("s_add_u32 s58, s58, 1")
    a("s_cmp_lt_u32 s58, 32")
    a(f"s_cbranch_scc1 {L('fb1')}")
    for q in range(2):
        set_negm_from(q, T0+2+q)
    for q in range(2):
        for i in range(16): a(f"v_mov_b32 v{O[q]+i}, 0")
    a("s_mov_b32 s58, 0")
    a("s_mov_b32 s59, s62")
    a.label(L('fb2'))
    a(f"buffer_load_dwordx4 v[{KAr[0]}:{KAr[0]+3}], v{aK}, s[8:11], s59 offen")
    a("s_mov_b64 exec, s[50:51]")
    a(f"buffer_load_dwordx2 v[{KBr[0]}:{KBr[0]+1}], v{aKB}, s[8:11], s59 offen")
    a("s_mov_b64 exec, s[52:53]")
    a(f"buffer_load_dwordx4 v[{V1}:{V1+3}], v{aV}, s[8:11], s59 offen")
    a(f"buffer_load_dwordx4 v[{V2}:{V2+3}], v{aV}, s[8:11], s59 offen offset:640")
    a("s_mov_b64 exec, -1")
    a("s_waitcnt vmcnt(0)")
    for q in range(2):
        a(qk_a(0, q, 0)); a(qk_b(0, q, 0))
    for q in range(2):
        for i in range(16): a(f"v_exp_f32 v{SS[0][q]+i}, v{SS[0][q]+i}")
        for i in range(8): a(f"v_cvt_pk_bf16_f32 v{P[q]+i}, v{SS[0][q]+2*i}, v{SS[0][q]+2*i+1}")
        a(pv(q, 0)); a(pv(q, 1))
    a(f"s_add_u32 s59, s59, {KVT}")
    a("s_add_u32 s58, s58, 1")
    a("s_cmp_lt_u32 s58, 32")
    a(f"s_cbranch_scc1 {L('fb2')}")
    a("s_barrier")
    a(f"s_branch {L('publish')}")

    a.label(L('aux'))
    a("s_setprio 2")
    a("s_sub_u32 s3, s3, 8")
    vq = VmQ(a)
    a("v_lshlrev_b32 v2, 4, v1")
    a(f"s_mul_i32 s50, s46, {64*KVT}")
    a("s_lshr_b32 s51, s3, 1")
    a(f"s_mul_i32 s51, s51, {32*KVT}")
    a("s_add_u32 s50, s50, s51")
    a("s_and_b32 s51, s3, 1")
    a("s_mul_i32 s51, s51, 5120")
    a("s_add_u32 s50, s50, s51")
    a("s_mul_i32 s51, s3, 5120")
    def kv_issue(st):
        slot = (st % 4)*STG
        for i in range(5):
            a(f"s_add_u32 m0, s51, {slot + 1024*i}")
            a(f"s_add_u32 s52, s50, {st*4*KVT + 1024*i}")
            vq.issue(('kv', st), "buffer_load_dwordx4 v2, s[8:11], s52 offen lds")
    if do_conv:
        srd(a, 12, 36, D*S*2)
        a("s_lshl_b32 s64, s2, 1")
        a("s_add_u32 s65, s64, 1")
        a("s_lshr_b32 s66, s2, 1")
        a("s_add_u32 s66, s66, 512")
        a("s_lshl_b32 s67, s2, 2")
        a("s_load_dword s68, s[38:39], s67")
        a("s_lshr_b32 s67, s66, 1")
        a("s_lshl_b32 s67, s67, 2")
        a("s_load_dword s70, s[38:39], s67")
        a("s_cmp_lt_u32 s3, 2")
        a(f"s_cbranch_scc1 {L('ha_addr')}")
        a("v_lshrrev_b32 v4, 3, v1")
        a("v_and_b32 v4, 2, v4")
        a("v_xor_b32 v4, v4, v1")
        a("v_lshlrev_b32 v3, 4, v4")
        a("s_sub_u32 s67, 3, s3")
        a("s_lshl_b32 s67, s67, 1")
        a("v_add_u32 v3, s67, v3")
        a(f"s_branch {L('addr_done')}")
        a.label(L('ha_addr'))
        a("s_lshl_b32 s67, s3, 2")
        a("s_sub_u32 s67, s67, 60")
        a("v_add_u32 v3, s67, v2")
        a.label(L('addr_done'))
        a("v_add_u32 v10, 64, v3")
        a(f"s_mov_b32 s71, {HA0}")
        for k_, off in ((1, HA1), (2, UB0), (3, UB1)):
            a(f"s_cmp_eq_u32 s3, {k_}")
            a(f"s_cselect_b32 s71, {off}, s71")
        a("s_mov_b64 s[72:73], -1")
        a("s_mov_b32 s74, 0x0fffffff")
        a("s_mov_b32 s75, 0")
        a("s_cmp_lt_u32 s3, 2")
        a("s_cselect_b32 s72, 0xfffffff0, s72")
        a("s_cselect_b32 s74, 0xf, s74")
        a("s_waitcnt lgkmcnt(0)")
        a("s_and_b32 s67, s68, 0xffff")
        a("s_lshr_b32 s68, s68, 16")
        a("s_and_b32 s69, s66, 1")
        a("s_lshl_b32 s69, s69, 4")
        a("s_lshr_b32 s69, s70, s69")
        a("s_and_b32 s69, s69, 0xffff")
        a("v_and_b32 v4, 15, v1")
        a("v_lshrrev_b32 v5, 4, v1")
        a("v_and_b32 v6, 1, v4")
        a("v_and_b32 v7, 14, v4")
        a("v_lshlrev_b32 v7, 2, v7")
        a("v_lshl_add_u32 v7, v5, 4, v7")
        a(f"v_mul_u32_u24 v8, {HA1-HA0}, v6")
        a("v_add_u32 v7, v7, v8")
        a("s_lshl_b32 s76, s3, 7")
        a("v_add_u32 v7, s76, v7")
        a("v_lshrrev_b32 v8, 1, v4")
        a("v_lshlrev_b32 v8, 2, v8")
        a("v_sub_u32 v8, v5, v8")
        a("s_lshl_b32 s76, s3, 3")
        a("s_add_u32 s76, s76, 28")
        a("v_add_u32 v8, s76, v8")
        a(f"v_mul_u32_u24 v11, {UB1-UB0}, v6")
        a(f"v_add_u32 v11, {UB0}, v11")
        for ii in range(2):
            if ii: a("v_add_u32 v8, 4, v8")
            a("v_lshrrev_b32 v9, 3, v8")
            a("v_and_b32 v9, 2, v9")
            a("v_xor_b32 v9, v9, v8")
            a(f"v_lshl_add_u32 v{12+ii}, v9, 4, v11")
        a("v_lshlrev_b32 v8, 1, v4")
        a("v_lshl_add_u32 v8, v5, 3, v8")
        for r in range(4):
            a(f"v_cmp_eq_u32 vcc, {30-2*r}, v8")
            a(f"v_mov_b32 v9, 0xffff")
            a(f"v_cndmask_b32 v{14+r}, 0, v9, vcc")
    ACC = 64; FA = 96; FB = 128; RT = 18
    def conv_issue(c):
        buf = CINB[c & 1]; sch = 64 + c
        lab = L(f'ci{c}')
        a(f"s_lshl_b32 s52, s{sch}, 12")
        a("v_mov_b32 v48, 0")
        vq.issue(('hs', c), f"buffer_load_dwordx2 v[{46+4*c}:{47+4*c}], v48, s[12:15], s52 offen")
        a(f"s_mul_i32 s53, s{sch}, {URP}")
        a(f"s_add_u32 s53, s53, {WS_UR}")
        a("s_add_u32 s16, s4, s53")
        a("s_addc_u32 s17, s5, 0")
        a("s_and_b32 s17, s17, 0xffff")
        a("s_mov_b32 s18, 4112")
        a("s_mov_b32 s19, 0x00020000")
        a(f"s_add_u32 s53, s71, {buf}")
        a("s_cmp_lt_u32 s3, 2")
        a(f"s_cbranch_scc1 {lab}_ha")
        n0 = len(vq.q)
        for i in range(5):
            if i == 4: a("s_mov_b64 exec, s[74:75]")
            a(f"s_add_u32 m0, s53, {1024*i}")
            a(f"s_mov_b32 s54, {1024*i}")
            a("buffer_load_dwordx4 v3, s[16:19], s54 offen lds")
        a(f"s_branch {lab}_done")
        a.label(f"{lab}_ha")
        for i in range(5):
            if i == 0: a("s_mov_b64 exec, s[72:73]")
            if i == 1: a("s_mov_b64 exec, -1")
            if i == 4: a("s_mov_b64 exec, s[74:75]")
            a(f"s_add_u32 m0, s53, {1024*i}")
            a(f"s_add_u32 s54, s52, {1024*i - (64 if i else 0)}")
            a(f"buffer_load_dwordx4 v{10 if i else 3}, s[12:15], s54 offen lds")
        a.label(f"{lab}_done")
        a("s_mov_b64 exec, -1")
        for i in range(5): vq.q.append(('ci', c))
    def conv_fixup(c):
        buf = CINB[c & 1]
        lab = L(f'fx{c}')
        vq.wait([('hs', c)])
        a("s_cmp_ge_u32 s3, 2")
        a(f"s_cbranch_scc1 {lab}")
        a("s_sub_u32 s52, 15, s3")
        a("v_cmp_eq_u32 vcc, s52, v1")
        a(f"v_cndmask_b32 v48, 0, v{46+4*c}, vcc")
        a("s_add_u32 s52, s52, 1")
        a("v_cmp_eq_u32 vcc, s52, v1")
        a(f"v_cndmask_b32 v48, v48, v{47+4*c}, vcc")
        a(f"s_add_u32 s52, s71, {buf}")
        a("v_lshlrev_b32 v49, 2, v1")
        a("v_add_u32 v49, s52, v49")
        a("s_mov_b64 exec, 0xffff")
        a("ds_write_b32 v49, v48")
        a("s_mov_b64 exec, -1")
        a.label(lab)
    def conv_compute(c, ii, betas, first):
        buf = CINB[c & 1]
        maxb = max(betas)
        a(f"v_add_u32 v58, {buf + 64*ii}, v7")
        a(f"v_add_u32 v59, {buf}, v{12+ii}")
        needB = sorted({b - j for b in betas for j in range(b + 1)})
        order = []
        for j in range(maxb + 1):
            order.append(('A', j))
            if j in needB: order.append(('B', j))
        for kind, j in order:
            if kind == 'A':
                a(f"ds_read_b64 v[{FA+4*j}:{FA+4*j+1}], v58 offset:{512*j}")
                a(f"ds_read_b64 v[{FA+4*j+2}:{FA+4*j+3}], v58 offset:{512*j+8}")
            else:
                a(f"ds_read_b64 v[{FB+4*j}:{FB+4*j+1}], v59 offset:{512*(7-j)}")
                a(f"ds_read_b64 v[{FB+4*j+2}:{FB+4*j+3}], v59 offset:{512*(7-j)+8}")
        pos = {k_: i for i, k_ in enumerate(order)}
        ml = sorted([(max(pos[('A', j)], pos[('B', b-j)]), b, j) for b in betas for j in range(b + 1)])
        started = set() if first else set(betas)
        waited = -1
        for lvl, b, j in ml:
            if lvl > waited:
                rem = 2*(len(order) - 1 - lvl)
                a(f"s_waitcnt lgkmcnt({min(rem, 15)})")
                waited = lvl
            acc = ACC + 4*b
            cs = f"v[{acc}:{acc+3}]" if b in started else "0"
            started.add(b)
            a(f"v_mfma_f32_16x16x32_bf16 v[{acc}:{acc+3}], v[{FA+4*j}:{FA+4*j+3}], v[{FB+4*(b-j)}:{FB+4*(b-j)+3}], {cs}")
        if ii == 0:
            lab = L(f'dt{c}')
            a("s_cmp_lg_u32 s3, 0")
            a(f"s_cbranch_scc1 {lab}")
            for r in range(4): a(f"v_and_b32 v{42+r}, s{67+c}, v{14+r}")
            for b in betas:
                acc = ACC + 4*b
                a(f"v_mfma_f32_16x16x32_bf16 v[{acc}:{acc+3}], v[42:45], v[{FB+4*b}:{FB+4*b+3}], v[{acc}:{acc+3}]")
            a.label(lab)
    def owner_map(betas):
        if len(betas) == 8: return {b: b >> 1 for b in betas}
        return {b: i for i, b in enumerate(betas)}
    def conv_write_partials(c, betas):
        own = owner_map(betas)
        for w in range(4):
            lab = L(f'wp{c}_{w}')
            a(f"s_cmp_lg_u32 s3, {w}")
            a(f"s_cbranch_scc1 {lab}")
            a(f"v_add_u32 v58, {SCR}, v2")
            k_ = 0
            for b in betas:
                o = own[b]; acc = ACC + 4*b
                ti = [x for x in betas if own[x] == o].index(b)
                if o == w:
                    for r in range(4): a(f"v_mov_b32 v{34+4*ti+r}, v{acc+r}")
                else:
                    si = (w - o - 1) & 3
                    a(f"ds_write_b128 v58, v[{acc}:{acc+3}] offset:{o*6144 + si*2048 + ti*1024}")
            a.label(lab)
        a("s_waitcnt lgkmcnt(0)")
    def conv_reduce(c, betas):
        nt = 2 if len(betas) == 8 else 1
        a("s_mul_i32 s52, s3, 6144")
        a(f"s_add_u32 s52, s52, {SCR}")
        a("v_add_u32 v58, s52, v2")
        for ti in range(nt):
            for si in range(3):
                if ti == 1 and si == 1: pass
                r = RT + 4*(si if ti == 0 else si)
            for si in range(3):
                a(f"ds_read_b128 v[{RT+4*si}:{RT+4*si+3}], v58 offset:{si*2048 + ti*1024}")
            a("s_waitcnt lgkmcnt(0)")
            for r in range(4):
                a(f"v_add_f32 v{RT+r}, v{RT+r}, v{RT+4+r}")
                a(f"v_add_f32 v{34+4*ti+r}, v{34+4*ti+r}, v{RT+8+r}")
                a(f"v_add_f32 v{RT+r}, v{RT+r}, v{34+4*ti+r}")
            a(f"v_cvt_pk_bf16_f32 v{30+2*ti}, v{RT}, v{RT+1}")
            a(f"v_cvt_pk_bf16_f32 v{31+2*ti}, v{RT+2}, v{RT+3}")
            if nt == 2:
                a("s_lshl_b32 s53, s3, 1")
                if ti: a("s_add_u32 s53, s53, 1")
            else:
                a("s_and_b32 s53, s2, 1")
                a("s_cmp_eq_u32 s53, 0")
                a("s_mov_b32 s54, 0x6521")
                a("s_cselect_b32 s53, 0x7430, s54")
                a("s_lshl_b32 s54, s3, 2")
                a("s_lshr_b32 s53, s53, s54")
                a("s_and_b32 s53, s53, 15")
            a("s_lshl_b32 s53, s53, 9")
            a(f"s_lshl_b32 s54, s{64+c}, 12")
            a("s_add_u32 s53, s53, s54")
            a(f"s_add_u32 s53, s53, {WS_Y}")
            a("v_lshlrev_b32 v59, 3, v1")
            vq.issue(('st', c), f"buffer_store_dwordx2 v[{30+2*ti}:{31+2*ti}], v59, s[8:11], s53 offen")
    FULL = list(range(8)); HE = [0, 3, 4, 7]; HO = [1, 2, 5, 6]
    def par(fn):
        l1 = a.newlabel(L('po')); l2 = a.newlabel(L('pd'))
        a("s_and_b32 s52, s2, 1")
        a("s_cmp_eq_u32 s52, 1")
        a(f"s_cbranch_scc1 {l1}")
        fn(HE, 'e')
        a(f"s_branch {l2}")
        a.label(l1)
        fn(HO, 'o')
        a.label(l2)
    kv_issue(0); kv_issue(1)
    if do_conv: conv_issue(0)
    kv_issue(2)
    if do_conv: conv_issue(1)
    kv_issue(3)
    vq.wait([('kv', 0)]); a("s_barrier")
    if do_conv: conv_fixup(0); vq.wait([('ci', 0)]); a("s_waitcnt lgkmcnt(0)")
    vq.wait([('kv', 1)]); a("s_barrier")
    if do_conv: conv_compute(0, 0, FULL, True)
    vq.wait([('kv', 2)]); a("s_barrier")
    kv_issue(4)
    if do_conv:
        conv_compute(0, 1, FULL, False); conv_write_partials(0, FULL)
        conv_fixup(1); vq.wait([('ci', 1)]); a("s_waitcnt lgkmcnt(0)")
    vq.wait([('kv', 3)]); a("s_barrier")
    kv_issue(5)
    if do_conv:
        conv_issue(2)
        conv_reduce(0, FULL); conv_compute(1, 0, FULL, True)
    vq.wait([('kv', 4)]); a("s_barrier")
    kv_issue(6)
    if do_conv:
        conv_compute(1, 1, FULL, False); conv_write_partials(1, FULL)
        conv_fixup(2); vq.wait([('ci', 2)]); a("s_waitcnt lgkmcnt(0)")
    vq.wait([('kv', 5)]); a("s_barrier")
    kv_issue(7)
    if do_conv:
        conv_reduce(1, FULL)
        def f(bs, tag):
            nonlocal L
            L0 = L
            L = lambda s, tag=tag: L0(s + tag)
            conv_compute(2, 0, bs, True); conv_compute(2, 1, bs, False)
            L = L0
        par(f)
    vq.wait([('kv', 6)]); a("s_barrier")
    if do_conv:
        def f(bs, tag):
            nonlocal L
            L0 = L
            L = lambda s, tag=tag: L0(s + tag)
            conv_write_partials(2, bs)
            L = L0
        par(f)
    vq.wait([('kv', 7)]); a("s_barrier")
    if do_conv: conv_reduce(2, HE)
    a("s_barrier")
    a.label(L('end'))
    a("s_endpgm")
    return kernel_text(name, a)
if __name__ == "__main__":
    gen_k2()
```

```python
from common import *
from k2 import VmQ
K3_BLOCK = 256
WOP = 160
WOB = 640*WOP
YB = WOB
YP = 128
K3_LDS = YB + 80*YP
def wo_lane(l):
    g = l >> 4; q = l & 15
    return (8*g + (q >> 2))*WOP + (q & 3)*8
print("K3 Wo tr cycles", lds_cycles('tr', [wo_lane(l) for l in range(64)]))

def gen_k3(name="oproj_kernel"):
    a = Asm()
    L = lambda s: f"{name}_{s}"
    a("s_cmp_ge_u32 s2, 256")
    a(f"s_cbranch_scc1 {L('end')}")
    a(f"s_load_dwordx2 s[4:5], s[0:1], {KA['ws']}")
    a(f"s_load_dwordx2 s[6:7], s[0:1], {KA['wo']}")
    a(f"s_load_dwordx2 s[36:37], s[0:1], {KA['x']}")
    a(f"s_load_dwordx2 s[38:39], s[0:1], {KA['out']}")
    a("v_lshrrev_b32 v2, 6, v0")
    a("v_and_b32 v1, 63, v0")
    a("v_readfirstlane_b32 s3, v2")
    a("s_and_b32 s46, s2, 7")
    a("s_lshr_b32 s47, s2, 5")
    a("s_bfe_u32 s48, s2, 0x20003")
    a("s_waitcnt lgkmcnt(0)")
    srd(a, 8, 4, WS_END)
    srd(a, 12, 6, D*D*2)
    srd(a, 16, 36, S*D*2)
    srd(a, 20, 38, S*D*2)
    vq = VmQ(a)
    a("v_and_b32 v2, 15, v1")
    a("s_lshl_b32 s49, s3, 4")
    a("v_add_u32 v3, s49, v2")
    a("v_lshrrev_b32 v4, 3, v3")
    a("v_lshlrev_b32 v4, 5, v4")
    a("v_bfe_u32 v5, v3, 2, 1")
    a("v_add_u32 v4, v4, v5")
    a("v_and_b32 v5, 3, v3")
    a("v_lshl_add_u32 v4, v5, 1, v4")
    a("s_lshl_b32 s49, s47, 8")
    a("s_lshl_b32 s50, s48, 3")
    a("s_add_u32 s49, s49, s50")
    a("v_add_u32 v4, s49, v4")
    a("v_lshrrev_b32 v5, 4, v1")
    a("v_mul_u32_u24 v6, 1280, v4")
    a("v_lshl_add_u32 v7, v5, 4, v6")
    a(f"v_add_u32 v7, {WS_O}, v7")
    a("s_mul_i32 s50, s46, 160")
    a("s_lshl_b32 s51, s3, 6")
    a("v_add_u32 v8, s51, v1")
    a("s_mov_b32 s52, 0xcccd")
    OB = 64
    NCH = 4
    def wo_issue(I):
        pass
    bounds = [7, 13, 19, 25]
    i0 = 0
    for kc in range(NCH):
        for ks in range(5):
            kk = 5*kc + ks
            vq.issue(('o', kc), f"buffer_load_dwordx4 v[{OB+4*kk}:{OB+4*kk+3}], v7, s[8:11], 0 offen offset:{64*kk}")
        for i in range(i0, bounds[kc]):
            a(f"v_add_u32 v9, {256*i}, v8")
            a("v_mul_u32_u24 v10, s52, v9")
            a("v_lshrrev_b32 v10, 19, v10")
            a("v_mul_u32_u24 v11, 1120, v10")
            a("v_lshl_add_u32 v11, v9, 4, v11")
            a(f"s_lshl_b32 s53, s3, 10")
            a(f"s_add_u32 m0, s53, {4096*i}")
            vq.issue(('w', kc), "buffer_load_dwordx4 v11, s[12:15], s50 offen lds")
        i0 = bounds[kc]
    a("v_lshrrev_b32 v9, 3, v8")
    a("v_lshlrev_b32 v9, 12, v9")
    a("v_and_b32 v10, 7, v1")
    a("v_lshl_add_u32 v9, v10, 4, v9")
    a(f"s_mul_i32 s53, s46, {80*4096}")
    a("s_lshl_b32 s54, s47, 9")
    a("s_add_u32 s53, s53, s54")
    a("s_lshl_b32 s54, s48, 7")
    a("s_add_u32 s53, s53, s54")
    a(f"s_add_u32 s53, s53, {WS_Y}")
    a("s_lshl_b32 s55, s3, 10")
    for i in range(3):
        if i == 2:
            a("s_cmp_ge_u32 s3, 2")
            a(f"s_cbranch_scc1 {L('noy')}")
        a(f"s_add_u32 m0, s55, {YB + 4096*i}")
        a(f"s_add_u32 s54, s53, {i*32*4096}")
        a("buffer_load_dwordx4 v9, s[8:11], s54 offen lds")
    a.label(L('noy'))
    a("v_lshl_add_u32 v12, v5, 3, v6")
    XR = 20
    for mt in range(5):
        a(f"buffer_load_dwordx2 v[{XR+2*mt}:{XR+2*mt+1}], v12, s[16:19], s50 offen offset:{32*mt}")
    a("v_lshlrev_b32 v13, 2, v4")
    a(f"v_add_u32 v13, {WS_G}, v13")
    a("buffer_load_dword v30, v13, s[8:11], 0 offen")
    TAIL = 8
    a("v_and_b32 v14, 15, v1")
    a("v_lshrrev_b32 v15, 2, v14")
    a("v_lshl_add_u32 v15, v5, 3, v15")
    a(f"v_mul_u32_u24 v15, {WOP}, v15")
    a("v_and_b32 v14, 3, v14")
    a("v_lshl_add_u32 v15, v14, 3, v15")
    a("v_add_u32 v16, 51200, v15")
    ACC = 32
    FA = [144, 164]
    def rd(kk, fs):
        R = []
        ad = 15 if kk < 10 else 16
        off = (kk % 10)*32*WOP
        for mt in range(5):
            R.append(f"ds_read_b64_tr_b16 v[{FA[fs]+4*mt}:{FA[fs]+4*mt+1}], v{ad} offset:{off + mt*32}")
            R.append(f"ds_read_b64_tr_b16 v[{FA[fs]+4*mt+2}:{FA[fs]+4*mt+3}], v{ad} offset:{off + mt*32 + 4*WOP}")
        return R
    q = list(vq.q)
    def wait_chunk(kc):
        idx = max(i for i, t in enumerate(q) if t in (('o', kc), ('w', kc)))
        n = len(q) - 1 - idx + TAIL
        a(f"s_waitcnt vmcnt({min(n, 63)})")
    wait_chunk(0); a("s_barrier")
    for r in rd(0, 0): a(r)
    for kk in range(20):
        fs = kk & 1
        a("s_waitcnt lgkmcnt(0)")
        if kk % 5 == 4 and kk < 19:
            wait_chunk(kk//5 + 1); a("s_barrier")
        nx = rd(kk+1, 1-fs) if kk < 19 else []
        for mt in range(5):
            for r in nx[2*mt:2*mt+2]: a(r)
            c = ACC + 4*mt
            cs = "0" if kk == 0 else f"v[{c}:{c+3}]"
            a(f"v_mfma_f32_16x16x32_bf16 v[{c}:{c+3}], v[{FA[fs]+4*mt}:{FA[fs]+4*mt+3}], v[{OB+4*kk}:{OB+4*kk+3}], {cs}")
    a("s_waitcnt vmcnt(0)")
    a("s_barrier")
    a("v_bfe_u32 v15, v1, 2, 2")
    a("v_lshl_add_u32 v15, v5, 2, v15")
    a("v_lshlrev_b32 v15, 7, v15")
    a("v_lshl_add_u32 v15, v14, 3, v15")
    a("s_lshl_b32 s53, s3, 5")
    a(f"s_add_u32 s53, s53, {YB}")
    a("v_add_u32 v15, s53, v15")
    YR = 64
    for mt in range(5):
        a(f"ds_read_b64_tr_b16 v[{YR+2*mt}:{YR+2*mt+1}], v15 offset:{mt*16*YP}")
    a("v_sub_f32 v31, 1.0, v30")
    a("s_mov_b32 s57, 0xffff0000")
    a("s_waitcnt lgkmcnt(0)")
    for mt in range(5):
        c = ACC + 4*mt
        for hf in range(2):
            xr = XR + 2*mt + hf; yr = YR + 2*mt + hf
            a(f"v_lshlrev_b32 v80, 16, v{xr}")
            a(f"v_and_b32 v81, s57, v{xr}")
            a(f"v_lshlrev_b32 v82, 16, v{yr}")
            a(f"v_and_b32 v83, s57, v{yr}")
            a("v_mul_f32 v80, v80, v82")
            a("v_mul_f32 v81, v81, v83")
            a("v_mul_f32 v80, v80, v31")
            a("v_mul_f32 v81, v81, v31")
            a(f"v_fmac_f32 v80, v{c+2*hf}, v30")
            a(f"v_fmac_f32 v81, v{c+2*hf+1}, v30")
            a(f"v_cvt_pk_bf16_f32 v{84+2*mt+hf}, v80, v81")
        a(f"buffer_store_dwordx2 v[{84+2*mt}:{85+2*mt}], v12, s[20:23], s50 offen offset:{32*mt}")
    a.label(L('end'))
    a("s_endpgm")
    return kernel_text(name, a)
if __name__ == "__main__":
    gen_k3()
```

```python
import sys
from common import *
import k1
HEADER = open('gated_mix__softmax_full_mha__ssm_conv_h3__prompt.s.ref').read().split('; Override launch')[0]
def build(kernels, path):
    out = [HEADER.rstrip('\n')]
    for (name, g, grid, block, lds) in kernels:
        out.append(f"; @launch kernel={name} grid=({grid},1,1) block=({block},1,1) lds={lds}")
    out.append('.amdgcn_target "amdgcn-amd-amdhsa--gfx950"')
    out.append('.text')
    descs = []
    for (name, g, grid, block, lds) in kernels:
        b, d = g(name)
        out.append(b); descs.append(d)
    out.append('.section .rodata,"a"')
    out += descs
    open(path, 'w').write('\n'.join(out))
if __name__ == "__main__":
    which = sys.argv[1] if len(sys.argv) > 1 else "123"
    path = sys.argv[2] if len(sys.argv) > 2 else 'gated_mix__softmax_full_mha__ssm_conv_h3__prompt.s'
    ks = []
    if '1' in which: ks.append(("proj_kernel", k1.gen_k1, 256, 512, k1.K1_LDS))
    if '2' in which:
        import k2
        ks.append(("attn_kernel", k2.gen_k2, 256, k2.K2_BLOCK, k2.K2_LDS))
    if '3' in which:
        import k3
        ks.append(("oproj_kernel", k3.gen_k3, 256, k3.K3_BLOCK, k3.K3_LDS))
    build(ks, path)
```
